```python
import torch

def _softmax(x, axis=-1):
    return torch.softmax(x, dim=axis)
def _gelu(x):
    return torch.nn.functional.gelu(x, approximate="tanh")
def _silu(x):
    return torch.nn.functional.silu(x)
def _sigmoid(x):
    return torch.sigmoid(x)
def _layernorm(x, axis=-1, eps=1e-5):
    m = x.mean(dim=axis, keepdim=True)
    v = x.var(dim=axis, keepdim=True, unbiased=False)
    return (x - m) / torch.sqrt(v + eps)
def _scatter_add(tgt, idx, src, axis=0):
    return tgt.clone().index_add_(axis, idx, src)
def _segment_sum(src, seg, n):
    out = torch.zeros((n,) + src.shape[1:], dtype=src.dtype)
    return out.index_add_(0, seg, src)
def _pad(x, pw):
    flat = tuple(v for pair in reversed(pw) for v in pair)
    return torch.nn.functional.pad(x, flat)

kernel_name = 'gated_mix__sliding_block_cached__glu_gated_reglu__decode'

def setup_inputs():

    _w = (lambda a: (lambda t: t.to(torch.bfloat16) if t.is_floating_point() else t)(torch.as_tensor(a)))
    def _A_setup():
        B, Sq, D = 1, 1, 576
        Hq, Hkv, Sk, Dh = 32, 16, 65536, 128
        assert Hq % Hkv == 0, (Hq, Hkv)
        return {
            "x": _w((lambda *s: torch.randn(*s, dtype=torch.bfloat16) * 0.05)(B, Sq, D)),
            "k_cache": _w((lambda *s: torch.randn(*s, dtype=torch.bfloat16) * 3.2)(B, Hkv, Sk, Dh)),
            "v_cache": _w((lambda *s: torch.randn(*s, dtype=torch.bfloat16) * 0.05)(B, Hkv, Sk, Dh)),
            "wq": _w((lambda *s: torch.randn(*s, dtype=torch.bfloat16) * 3.2)(D, Hq * Dh) * (D ** -0.5)),
            "wo": _w((lambda *s: torch.randn(*s, dtype=torch.bfloat16) * 0.05)(Hq * Dh, D) * ((Hq * Dh) ** -0.5)),
        }
    _A_in = _A_setup()

    def _B_setup():
        B, S, D, F = 1, 1, 576, 4608
        return {
            "x": _w((lambda *s: torch.randn(*s, dtype=torch.bfloat16) * 0.05)(B, S, D)),
            "W_gate": _w((lambda *s: torch.randn(*s, dtype=torch.bfloat16) * 0.2)(D, F) * (2.0 / D) ** 0.5),
            "W_up": _w((lambda *s: torch.randn(*s, dtype=torch.bfloat16) * 0.2)(D, F) * (2.0 / D) ** 0.5),
            "W_down": _w((lambda *s: torch.randn(*s, dtype=torch.bfloat16) * 0.2)(F, D) * (1.0 / F) ** 0.5),
        }
    _B_in = _B_setup()

    return {
        "A_x": _A_in["x"],
        "A_k_cache": _A_in["k_cache"],
        "A_v_cache": _A_in["v_cache"],
        "A_wq": _A_in["wq"],
        "A_wo": _A_in["wo"],
        "B_x": _B_in["x"],
        "B_W_gate": _B_in["W_gate"],
        "B_W_up": _B_in["W_up"],
        "B_W_down": _B_in["W_down"],
        "gate_w": _w((lambda *s: torch.randn(*s, dtype=torch.bfloat16) * 0.05)(576) * 16.0),
    }

def reference(A_x, A_k_cache, A_v_cache, A_wq, A_wo, B_x, B_W_gate, B_W_up, B_W_down, gate_w):
    def _A_ref(x, k_cache, v_cache, wq, wo):
        B, Sq, D = x.shape
        Hq, Dh = 32, 128
        Hkv, Sk = k_cache.shape[1], k_cache.shape[2]
        W = min(4096, max(256, Sk // 4))
        rep = Hq // Hkv
        q = (lambda x, *d: x.permute(*d))((x @ wq).reshape(B, Sq, Hq, Dh), 0, 2, 1, 3)
        k = (lambda x, n, axis: torch.repeat_interleave(x, n, dim=axis))(k_cache[:, :, Sk - W:, :], rep, axis=1)
        v = (lambda x, n, axis: torch.repeat_interleave(x, n, dim=axis))(v_cache[:, :, Sk - W:, :], rep, axis=1)
        scores = torch.einsum("bhqd,bhkd->bhqk", q, k) * (Dh ** -0.5)
        p = _softmax(scores, axis=-1)
        o = torch.einsum("bhqk,bhkd->bhqd", p, v)
        return (lambda x, *d: x.permute(*d))(o, 0, 2, 1, 3).reshape(B, Sq, Hq * Dh) @ wo

    def _B_ref(x, W_gate, W_up, W_down):
        gate = torch.einsum("bsd,df->bsf", x, W_gate)
        up = torch.einsum("bsd,df->bsf", x, W_up)
        gate = gate * (lambda x, dt: x.to(dt))(gate > 0, gate.dtype)
        h = gate * up
        return torch.einsum("bsf,fd->bsd", h, W_down)

    x = A_x
    g = _sigmoid((x * gate_w).sum(-1, keepdims=True))
    a = _A_ref(x, A_k_cache, A_v_cache, A_wq, A_wo)
    b = _B_ref(x, B_W_gate, B_W_up, B_W_down)
    return g * a + (1 - g) * b
```

```python
KN = "gated_mix__sliding_block_cached__glu_gated_reglu__decode"
HDR = """; Kernarg layout for this problem (104 bytes, ptrs only, base s[0:1]):
"""
def wrap(body, grid, block, lds, vgpr, sgpr=96, accum=None, name=None):
    name = name or KN + "_kernel"
    accum = accum or ((vgpr + 3) // 4 * 4)
    return HDR + f"""; @launch grid=({grid},1,1) block=({block},1,1) lds={lds}
.amdgcn_target "amdgcn-amd-amdhsa--gfx950"
.text
.globl {name}
.p2align 8
.type {name},@function
{name}:
{body}
.section .rodata,"a"
.p2align 6
.amdhsa_kernel {name}
  .amdhsa_next_free_vgpr {vgpr}
  .amdhsa_next_free_sgpr {sgpr}
  .amdhsa_accum_offset {accum}
  .amdhsa_group_segment_fixed_size 0
  .amdhsa_kernarg_size 104
  .amdhsa_user_sgpr_count 2
  .amdhsa_user_sgpr_kernarg_segment_ptr 1
  .amdhsa_system_sgpr_workgroup_id_x 1
  .amdhsa_float_denorm_mode_32 3
  .amdhsa_float_denorm_mode_16_64 3
.end_amdhsa_kernel
"""
```

```python
import sys, math
from common import *

QG   = 0x1000
GATE = QG + 64 * 256
UP   = QG + 136 * 256
ST   = 0x10000
OG   = 0x20000
FG   = 0x80000
L_P1 = 0x0; L_Q = 0x1200; L_CB = 0x1400; L_CA = 0x1480; L_MX = 0x14C0; L_LW = 0x1500; L_G = 0x1540; L_O = 0x2000
LDS_BYTES = 0x4000
CSCALE = (128 ** -0.5) * math.log2(math.e)
import struct
def f2u(x): return struct.unpack("<I", struct.pack("<f", x))[0]
SPIN = 20000

def gen(stamps=False, nt="nt"):
    L = []; A = L.append
    nst = [0]
    def stamp(i):
        if stamps: A(f"s_memrealtime s[{70+2*i}:{71+2*i}]")
    def srd(d, lo, size):
        A(f"s_mov_b32 s{d}, s{lo}"); A(f"s_mov_b32 s{d+1}, s{lo+1}")
        A(f"s_mov_b32 s{d+2}, {size}"); A(f"s_mov_b32 s{d+3}, 0x20000")
    def setexec(lo, hi):
        A(f"s_mov_b32 exec_lo, {lo:#x}"); A(f"s_mov_b32 exec_hi, {hi:#x}")
    def fullexec(): A("s_mov_b64 exec, -1")
    def tagify(r):
        for k in range(4): A(f"v_bfi_b32 v{r+k}, v7, s{60+k}, v{r+k}")
    def check(r, acc, first):
        for k in range(4):
            if first and k == 0: A(f"v_xor_b32 v{acc}, s60, v{r}")
            else: A(f"v_bitop3_b32 v{acc}, v{r+k}, s{60+k}, v{acc} bitop3:0xbe")
    def row_allreduce(op, regs):
        for sh in (8, 4, 2, 1):
            if len(regs) < 3: A(f"s_nop {2-len(regs)}")
            elif sh == 8: A("s_nop 1")
            for r in regs: A(f"{op}_dpp v{r}, v{r}, v{r} row_ror:{sh} row_mask:0xf bank_mask:0xf")
    def xrow_allreduce(op, regs, tmps):
        for sw in ("v_permlane16_swap_b32", "v_permlane32_swap_b32"):
            for r, t in zip(regs, tmps): A(f"v_mov_b32 v{t}, v{r}")
            if len(regs) < 3: A(f"s_nop {2-len(regs)}" if len(regs) < 2 else "s_nop 0")
            if len(regs) == 2: A("s_nop 0")
            for r, t in zip(regs, tmps): A(f"{sw} v{r}, v{t}")
            if len(regs) < 2: A("s_nop 0")
            for r, t in zip(regs, tmps): A(f"{op} v{r}, v{r}, v{t}")
    def onehot_mfma(acc, coef, breg, aset, cinit=None, swap=False):
        for k in range(4): A(f"v_and_b32 v{aset+k}, v{coef}, v{8+k}")
        A("s_nop 1")
        c = f"v[{acc}:{acc+3}]" if cinit is None else cinit
        A(f"v_mfma_f32_16x16x32_bf16 v[{acc}:{acc+3}], v[{aset}:{aset+3}], v[{breg}:{breg+3}], {c}")

    stamp(0)
    A("s_cmp_ge_u32 s2, 256"); A("s_cbranch_scc1 L_end")
    A("s_load_dwordx16 s[4:19], s[0:1], 0")
    A("s_load_dwordx8 s[20:27], s[0:1], 64")
    A("s_load_dwordx2 s[28:29], s[0:1], 96")
    A("s_setprio 3")
    A("v_lshrrev_b32 v5, 6, v0"); A("v_and_b32 v1, 63, v0")
    A("v_readfirstlane_b32 s3, v5")
    A("v_lshrrev_b32 v6, 4, v1")
    A("v_bfe_u32 v152, v1, 3, 1")
    A("v_lshl_add_u32 v153, v152, 2, v6")
    A("v_and_b32 v154, 7, v1"); A("v_lshlrev_b32 v154, 4, v154")
    A("s_mov_b32 s30, s2")
    A("s_movk_i32 s66, 0x2400"); A("s_cmp_lt_u32 s30, 64"); A("s_cselect_b32 s66, 0x2000, s66")
    A("s_lshl_b32 s31, s66, 3")
    A("v_mad_u32_u24 v2, v153, s31, v154")
    A("s_lshl_b32 s31, s3, 7")
    A("v_lshl_add_u32 v5, v153, 4, s31")
    A("v_and_b32 v155, 3, v1"); A("v_bfe_u32 v156, v1, 2, 2"); A("v_lshl_add_u32 v155, v155, 2, v156")
    A("v_lshlrev_b32 v155, 8, v155"); A("v_lshl_add_u32 v3, v6, 4, v155")
    A("v_lshlrev_b32 v4, 4, v1")
    A("s_sub_u32 s31, s30, 64"); A("s_cmp_lt_u32 s30, 64"); A("s_cselect_b32 s31, s30, s31")
    A("s_sub_u32 s64, s30, 136"); A("s_cmp_lt_u32 s30, 136"); A("s_cselect_b32 s31, s31, s64")
    A("s_lshl_b32 s31, s31, 7")
    A("s_lshl_b32 s64, s3, 6"); A("s_mul_i32 s64, s64, s66"); A("s_add_u32 s67, s31, s64")
    A("s_lshr_b32 s64, s2, 4"); A("s_lshl_b32 s64, s64, 24"); A("s_and_b32 s65, s2, 15"); A("s_lshl_b32 s65, s65, 16")
    A("s_add_u32 s64, s64, s65"); A(f"s_add_u32 s64, s64, {(65536-4096)*256}")
    A("s_lshl_b32 s68, s3, 13"); A("s_add_u32 s69, s68, 4096")
    A("s_waitcnt lgkmcnt(0)")
    A("s_load_dword s60, s[28:29], 0")
    srd(52, 4, 1152)
    A("s_cmp_ge_u32 s30, 208"); A("s_cbranch_scc1 L_nop1a")
    A("buffer_load_dwordx4 v[12:15], v5, s[52:55], 0 offen")
    A("s_cmp_lt_u32 s30, 136"); A("s_cselect_b64 s[40:41], s[16:17], s[18:19]")
    A("s_cmp_lt_u32 s30, 64"); A("s_cselect_b64 s[40:41], s[10:11], s[40:41]")
    A("s_mul_i32 s42, s66, 576"); A("s_mov_b32 s43, 0x20000")
    for n in range(8):
        A(f"buffer_load_dwordx4 v[{40+4*n}:{43+4*n}], v2, s[40:43], s67 offen {nt}")
        if n < 7: A("s_add_u32 s67, s67, s66")
    A("L_nop1a:")
    A("s_add_u32 s32, s6, s64"); A("s_addc_u32 s33, s7, 0"); A("s_mov_b32 s34, 0x10000"); A("s_mov_b32 s35, 0x20000")
    A("s_add_u32 s36, s8, s64"); A("s_addc_u32 s37, s9, 0"); A("s_mov_b32 s38, 0x10000"); A("s_mov_b32 s39, 0x20000")
    A("s_cmp_eq_u32 s3, 8"); A("s_cbranch_scc1 L_skipK1")
    A("s_setprio 2")
    for ks in range(4):
        A(f"buffer_load_dwordx4 v[{72+4*ks}:{75+4*ks}], v3, s[32:35], s68 offen offset:{64*ks} {nt}")
    A("s_branch L_k1done")
    A("L_skipK1:")
    srd(56, 22, 1152)
    A("buffer_load_dwordx4 v[72:75], v4, s[52:55], 0 offen")
    A("buffer_load_dwordx4 v[76:79], v4, s[52:55], 0 offen offset:1024")
    A("buffer_load_dwordx4 v[80:83], v4, s[56:59], 0 offen")
    A("buffer_load_dwordx4 v[84:87], v4, s[56:59], 0 offen offset:1024")
    A("L_k1done:")
    A("v_and_b32 v155, 1, v1"); A("v_lshlrev_b32 v155, 4, v155"); A("v_mov_b32 v156, 0xffff"); A("v_lshlrev_b32 v155, v155, v156")
    A("v_bfe_u32 v156, v1, 1, 2")
    for k in range(4):
        A(f"v_cmp_eq_u32 vcc, {k}, v156"); A("s_nop 1"); A(f"v_cndmask_b32 v{8+k}, 0, v155, vcc")
    A("v_mov_b32 v7, 0x3ff")
    A("s_mul_i32 s64, s2, 18432")
    A("s_add_u32 s44, s12, s64"); A("s_addc_u32 s45, s13, 0"); A("s_mov_b32 s46, 18432"); A("s_mov_b32 s47, 0x20000")
    srd(48, 20, 4608 * 1152)
    A("s_mov_b32 s90, s64")
    A("s_sub_u32 s91, s30, 224"); A("s_mul_i32 s91, s91, 18432"); A(f"s_add_u32 s91, s91, {4096*1152}")
    A("s_cmp_lt_u32 s30, 224"); A("s_cselect_b32 s91, 0, s91")
    A("s_mov_b32 s92, 0x01000100"); A("s_mov_b32 s93, 0x03020302")
    A("s_waitcnt lgkmcnt(0)")
    A("s_add_u32 s94, s60, 1")
    A("s_and_b32 s60, s94, 0x3ff")
    for k in range(1, 4):
        A(f"s_add_u32 s{60+k}, s94, {0x155*k}"); A(f"s_and_b32 s{60+k}, s{60+k}, 0x3ff")
    A("s_cmp_ge_u32 s30, 208"); A("s_cbranch_scc1 L_nop1b")
    A("s_waitcnt vmcnt(11)")
    for n in range(8):
        A(f"v_perm_b32 v157, v{12+(n>>1)}, v{12+(n>>1)}, s{92+(n&1)}")
        aset = 16 + 4 * (n & 1)
        for k in range(4): A(f"v_and_b32 v{aset+k}, v157, v{8+k}")
        A(f"s_waitcnt vmcnt({4+7-n})")
        A("s_nop 0")
        A(f"v_mfma_f32_16x16x32_bf16 v[24:27], v[{aset}:{aset+3}], v[{40+4*n}:{43+4*n}], " + ("0" if n == 0 else "v[24:27]"))
    A("v_lshlrev_b32 v155, 1, v154"); A("v_lshl_add_u32 v155, v152, 8, v155")
    A("v_and_b32 v156, 1, v6"); A("v_lshl_add_u32 v155, v156, 4, v155")
    A("s_lshl_b32 s64, s3, 9"); A("v_add_u32 v155, s64, v155")
    setexec(0x00ff00ff, 0xff00ff00)
    A("s_nop 3")
    A(f"ds_write_b128 v155, v[24:27] offset:{L_P1}")
    fullexec()
    A("s_waitcnt lgkmcnt(0)")
    A("s_barrier")
    A("L_nop1b:")
    A("s_movk_i32 s64, 2304"); A("v_mad_u32_u24 v2, v153, s64, v154"); A("s_lshl_b32 s64, s3, 7"); A("v_add_u32 v2, s64, v2")
    A("v_lshlrev_b32 v153, 3, v153")
    A("s_cmp_eq_u32 s3, 8"); A("s_cbranch_scc1 L_swave")

    stamp(1)
    for ks in range(4):
        A(f"buffer_load_dwordx4 v[{88+4*ks}:{91+4*ks}], v3, s[32:35], s69 offen offset:{64*ks} {nt}")
    A("s_setprio 1")
    for t in range(2):
        for r in range(4):
            b = 104 + 16 * t + 4 * r
            A(f"buffer_load_dwordx4 v[{b}:{b+3}], v4, s[36:39], s{68+t} offen offset:{1024*r} {nt}")
    A("s_setprio 0")
    for n in range(2):
        A(f"buffer_load_dwordx4 v[{40+4*n}:{43+4*n}], v2, s[44:47], 0 offen offset:{1152*n} {nt}")
    stamp(2)
    A("s_barrier")
    stamp(3)
    def wd_issue():
        A(f"ds_read_b64 v[64:65], v153 offset:{L_CB}")
        A(f"ds_read_b64 v[66:67], v153 offset:{L_CB+64}")
    def wd_loads():
        A("v_bfrev_b32 v156, 1")
        for n in range(4):
            A(f"v_cmp_eq_u32 vcc, 0, v{64+n}"); A("s_nop 1"); A(f"v_cndmask_b32 v{68+n}, v2, v156, vcc")
        for n in range(4):
            A(f"buffer_load_dwordx4 v[{48+4*n}:{51+4*n}], v{68+n}, s[48:51], s{90+(n>>1)} offen offset:{1152*(n&1)} {nt}")
    wd_issue()
    A("v_lshlrev_b32 v155, 8, v152"); A("v_lshl_add_u32 v155, v6, 4, v155")
    for ks in range(4):
        A(f"ds_read_b128 v[{136+4*ks}:{139+4*ks}], v155 offset:{L_Q + 64*ks}")
    A("s_waitcnt lgkmcnt(4)")
    wd_loads()
    A("s_waitcnt lgkmcnt(0)")
    A("s_waitcnt vmcnt(18)")
    for ks in range(4):
        A(f"v_mfma_f32_16x16x32_bf16 v[28:31], v[{72+4*ks}:{75+4*ks}], v[{136+4*ks}:{139+4*ks}], " + ("0" if ks == 0 else "v[28:31]"))
    A("s_waitcnt vmcnt(14)")
    for ks in range(4):
        A(f"v_mfma_f32_16x16x32_bf16 v[32:35], v[{88+4*ks}:{91+4*ks}], v[{136+4*ks}:{139+4*ks}], " + ("0" if ks == 0 else "v[32:35]"))
    A("s_nop 3")
    A("v_max3_f32 v157, v28, v29, v30")
    A("v_lshlrev_b32 v155, 5, v152"); A("s_lshl_b32 s64, s3, 2"); A("v_add_u32 v156, s64, v155")
    A("s_nop 0")
    A("v_max3_f32 v157, v157, v31, v32"); A("v_max3_f32 v157, v157, v33, v34"); A("v_max_f32 v157, v157, v35")
    xrow_allreduce("v_max_f32", [157], [158])
    A(f"ds_write_b32 v156, v157 offset:{L_MX}")
    A("s_waitcnt lgkmcnt(0)")
    A("s_barrier")
    A(f"ds_read_b128 v[160:163], v155 offset:{L_MX}")
    A(f"ds_read_b128 v[164:167], v155 offset:{L_MX+16}")
    A(f"s_mov_b32 s64, {f2u(CSCALE):#x}")
    A("s_waitcnt lgkmcnt(0)")
    A("v_max3_f32 v157, v160, v161, v162"); A("v_max3_f32 v157, v157, v163, v164"); A("v_max3_f32 v157, v157, v165, v166"); A("v_max_f32 v157, v157, v167")
    A("v_mul_f32 v157, s64, v157")
    for i in range(8): A(f"v_fma_f32 v{28+i}, v{28+i}, s64, -v157")
    for i in range(8): A(f"v_exp_f32 v{28+i}, v{28+i}")
    A("s_nop 0")
    A("v_add_f32 v158, v28, v29"); A("v_add_f32 v159, v30, v31"); A("v_add_f32 v160, v32, v33"); A("v_add_f32 v161, v34, v35")
    A("v_add_f32 v158, v158, v159"); A("v_add_f32 v160, v160, v161"); A("v_add_f32 v158, v158, v160")
    xrow_allreduce("v_add_f32", [158], [159])
    A(f"ds_write_b32 v156, v158 offset:{L_LW}")
    for i in range(8):
        A(f"v_cvt_pk_bf16_f32 v{28+i}, v{28+i}, v{28+i}")
    for i in range(8):
        for k in range(4): A(f"v_and_b32 v{72+4*i+k}, v{28+i}, v{8+k}")
    stamp(4)
    for i in range(8):
        A(f"s_waitcnt vmcnt({6+7-i})")
        A(f"v_mfma_f32_16x16x32_bf16 v[36:39], v[{72+4*i}:{75+4*i}], v[{104+4*i}:{107+4*i}], " + ("0" if i == 0 else "v[36:39]"))
    A("s_lshl_b32 s64, s3, 10"); A("v_add_u32 v155, s64, v4")
    A("s_nop 6")
    A(f"ds_write_b128 v155, v[36:39] offset:{L_O}")
    A("s_waitcnt lgkmcnt(0)")
    stamp(5)
    A("s_barrier")
    def accB():
        A(f"v_mov_b32 v156, 0"); A(f"ds_read_b64 v[158:159], v156 offset:{L_G}")
        for n in range(4):
            onehot_mfma(24, 64 + n, 48 + 4 * n, 16 + 4 * (n & 1), "0" if n == 0 else None)
        A("s_waitcnt lgkmcnt(0)")
        A("s_nop 6")
        for k in range(4): A(f"v_mul_f32 v{24+k}, v159, v{24+k}")
    A("s_waitcnt vmcnt(0)")
    accB()
    A("s_branch L_join")

    A("L_swave:")
    stamp(1)
    A("s_waitcnt vmcnt(0)")
    A("s_cmp_ge_u32 s30, 208"); A("s_cbranch_scc1 L_nopub")
    A("v_lshlrev_b32 v155, 2, v1")
    for i in range(9):
        A(f"ds_read2st64_b32 v[{104+2*i}:{105+2*i}], v155 offset0:{2*i} offset1:{2*i+1}")
    A("v_and_b32 v156, 3, v1"); A("s_movk_i32 s64, 0x155"); A("v_mul_u32_u24 v156, s64, v156"); A("v_add_u32 v156, s94, v156")
    A("s_waitcnt lgkmcnt(0)")
    for i in range(9): A(f"v_add_f32 v{104+2*i}, v{104+2*i}, v{105+2*i}")
    for i in (0, 2, 4, 6): A(f"v_add_f32 v{104+2*i}, v{104+2*i}, v{106+2*i}")
    A("v_add_f32 v104, v104, v108"); A("v_add_f32 v112, v112, v116"); A("v_add_f32 v104, v104, v120"); A("v_add_f32 v104, v104, v112")
    A("v_cvt_pk_bf16_f32 v104, v104, v104")
    A("s_lshl_b32 s64, s30, 8"); A(f"s_add_u32 s64, s64, {QG}")
    A("v_add_u32 v155, s64, v155")
    A("v_bfi_b32 v104, v7, v156, v104")
    A("global_store_dword v155, v104, s[28:29] sc1")
    A("L_nopub:")
    stamp(2)
    for n in range(2):
        A(f"buffer_load_dwordx4 v[{40+4*n}:{43+4*n}], v2, s[44:47], 0 offen offset:{1152*n} {nt}")
    A("v_mov_b32 v157, 0"); A("s_mov_b32 s64, 0x3f803f80"); A("s_mov_b32 s65, 0xffff0000")
    for i in range(8):
        x = 72 + i; w = 80 + i
        A(f"v_lshlrev_b32 v158, 16, v{x}"); A(f"v_lshlrev_b32 v159, 16, v{w}")
        A(f"v_and_b32 v160, s65, v{x}"); A(f"v_and_b32 v161, s65, v{w}")
        A("v_mul_f32 v158, v158, v159"); A("v_mul_f32 v160, v160, v161")
        A("v_cvt_pk_bf16_f32 v158, v158, v160")
        A("v_lshlrev_b32 v159, 16, v158"); A("v_and_b32 v158, s65, v158")
        A("v_add_f32 v157, v157, v159"); A("v_add_f32 v157, v157, v158")
    row_allreduce("v_add_f32", [157])
    xrow_allreduce("v_add_f32", [157], [158])
    A("v_cvt_pk_bf16_f32 v157, v157, v157"); A("v_and_b32 v157, s65, v157")
    A(f"v_mul_f32 v157, {f2u(-math.log2(math.e)):#x}, v157"); A("v_exp_f32 v157, v157"); A("s_nop 0")
    A("v_add_f32 v157, 1.0, v157"); A("v_rcp_f32 v157, v157"); A("s_nop 0")
    A("v_cvt_pk_bf16_f32 v157, v157, v157"); A("v_and_b32 v100, s65, v157")
    A("v_sub_f32 v157, 1.0, v100"); A("v_cvt_pk_bf16_f32 v157, v157, v157"); A("v_and_b32 v101, s65, v157")
    A("v_mov_b32 v156, 0"); A(f"ds_write_b64 v156, v[100:101] offset:{L_G}")
    A("s_lshr_b32 s64, s2, 4"); A("s_lshl_b32 s64, s64, 10"); A(f"s_add_u32 s64, s64, {QG}"); A("v_add_u32 v88, s64, v4")
    A("s_lshl_b32 s64, s2, 6"); A(f"s_add_u32 s64, s64, {GATE}")
    A("s_sub_u32 s65, s30, 224"); A("s_lshl_b32 s65, s65, 6"); A(f"s_add_u32 s65, s65, {GATE + 4096*4 - 64}")
    A("v_mov_b32 v89, s64"); A("v_mov_b32 v90, s65"); A("v_cmp_gt_u32 vcc, 4, v1"); A("s_nop 1"); A("v_cndmask_b32 v89, v90, v89, vcc")
    A("v_add_u32 v89, v89, v4")
    A(f"v_add_u32 v90, {UP-GATE}, v89")
    A("s_cmp_lt_u32 s30, 224"); A("s_cselect_b32 s65, 0xf, 0xff")
    for r in range(76, 84): A(f"v_mov_b32 v{r}, 0")
    A(f"s_movk_i32 s95, {SPIN}")
    A("L_qpoll:")
    A("global_load_dwordx4 v[72:75], v88, s[28:29] sc1")
    A("s_mov_b32 exec_lo, s65"); A("s_mov_b32 exec_hi, 0")
    A("global_load_dwordx4 v[76:79], v89, s[28:29] sc1")
    A("global_load_dwordx4 v[80:83], v90, s[28:29] sc1")
    fullexec()
    A("s_waitcnt vmcnt(0)")
    check(72, 157, True)
    A("s_mov_b32 exec_lo, s65"); A("s_mov_b32 exec_hi, 0")
    check(76, 157, False); check(80, 157, False)
    fullexec()
    A("v_and_b32 v157, v7, v157"); A("v_cmp_ne_u32 vcc, 0, v157")
    A("s_sub_u32 s95, s95, 1"); A("s_cbranch_scc1 L_qdone")
    A("s_cbranch_vccnz L_qpoll")
    A("L_qdone:")
    stamp(3)
    A("s_mov_b32 s64, 0x07060302")
    A("v_perm_b32 v72, v73, v72, s64"); A("v_perm_b32 v73, v75, v74, s64")
    A("v_lshlrev_b32 v155, 3, v1")
    A(f"ds_write_b64 v155, v[72:73] offset:{L_Q}")
    A("s_mov_b32 s64, 0xffff0000")
    for k in range(4):
        A(f"v_and_b32 v{76+k}, s64, v{76+k}"); A(f"v_and_b32 v{80+k}, s64, v{80+k}")
        A(f"v_max_f32 v{76+k}, 0, v{76+k}"); A(f"v_fma_f32 v{76+k}, v{76+k}, v{80+k}, 0")
        A(f"v_cvt_pk_bf16_f32 v{76+k}, v{76+k}, v{76+k}")
    setexec(0xff, 0)
    A(f"ds_write_b128 v4, v[76:79] offset:{L_CB}")
    fullexec()
    A("s_waitcnt lgkmcnt(0)")
    A("s_barrier")
    wd_issue()
    A("s_waitcnt lgkmcnt(0)")
    wd_loads()
    A("v_lshrrev_b32 v155, 5, v1"); A("v_bfe_u32 v156, v1, 1, 3"); A("v_lshl_add_u32 v155, v155, 3, v156"); A("v_lshlrev_b32 v155, 10, v155")
    A("v_and_b32 v156, 1, v1"); A("v_lshl_add_u32 v155, v156, 5, v155")
    A("v_and_b32 v156, 1, v6"); A("v_lshl_add_u32 v155, v156, 4, v155")
    A("s_lshr_b32 s64, s2, 4"); A("s_lshl_b32 s64, s64, 14"); A("s_and_b32 s65, s2, 15"); A("s_lshl_b32 s96, s65, 6")
    A("s_add_u32 s96, s96, s64"); A(f"s_add_u32 s96, s96, {OG}"); A("v_add_u32 v88, s96, v155")
    A("v_and_b32 v155, 15, v1"); A("v_lshlrev_b32 v156, 6, v155"); A("v_lshl_add_u32 v156, v6, 4, v156")
    A("s_lshl_b32 s96, s65, 10"); A("s_add_u32 s96, s96, s64"); A(f"s_add_u32 s96, s96, {OG}"); A("v_add_u32 v89, s96, v156")
    A("s_lshr_b32 s64, s2, 4"); A("s_lshl_b32 s64, s64, 9"); A(f"s_add_u32 s64, s64, {ST}")
    A("s_lshr_b32 s96, s65, 3"); A("s_lshl_b32 s96, s96, 8"); A("s_add_u32 s96, s96, s64")
    A("v_lshlrev_b32 v155, 4, v155"); A("v_add_u32 v90, s96, v155")
    A("s_lshl_b32 s96, s65, 4"); A("s_add_u32 s96, s96, s64")
    A("v_lshrrev_b32 v155, 5, v1"); A("v_lshlrev_b32 v156, 8, v155"); A("v_add_u32 v91, s96, v156")
    A("v_lshlrev_b32 v92, 5, v155")
    A("s_barrier")
    A(f"ds_read_b128 v[160:163], v92 offset:{L_MX}")
    A(f"ds_read_b128 v[164:167], v92 offset:{L_MX+16}")
    A(f"s_mov_b32 s64, {f2u(CSCALE):#x}")
    A("s_waitcnt lgkmcnt(0)")
    A("v_max3_f32 v157, v160, v161, v162"); A("v_max3_f32 v157, v157, v163, v164"); A("v_max3_f32 v157, v157, v165, v166"); A("v_max_f32 v157, v157, v167")
    A("v_mul_f32 v157, s64, v157")
    A("v_bfi_b32 v96, v7, s60, v157")
    A("v_sub_f32 v97, v157, v96"); A("v_bfi_b32 v97, v7, s61, v97")
    stamp(4)
    A("s_barrier")
    stamp(5)
    for w in range(8):
        A(f"ds_read_b128 v[{104+4*w}:{107+4*w}], v4 offset:{L_O + 1024*w}")
    A(f"ds_read_b128 v[160:163], v92 offset:{L_LW}")
    A(f"ds_read_b128 v[164:167], v92 offset:{L_LW+16}")
    for st in range(4):
        A(f"s_waitcnt lgkmcnt({8-2*st})")
        a = 104 + 8 * st
        A(f"v_pk_add_f32 v[{a}:{a+1}], v[{a}:{a+1}], v[{a+4}:{a+5}]"); A(f"v_pk_add_f32 v[{a+2}:{a+3}], v[{a+2}:{a+3}], v[{a+6}:{a+7}]")
    for a, b in ((104, 112), (120, 128), (104, 120)):
        A(f"v_pk_add_f32 v[{a}:{a+1}], v[{a}:{a+1}], v[{b}:{b+1}]"); A(f"v_pk_add_f32 v[{a+2}:{a+3}], v[{a+2}:{a+3}], v[{b+2}:{b+3}]")
    tagify(104)
    A("global_store_dwordx4 v88, v[104:107], s[28:29] sc1")
    A("s_waitcnt lgkmcnt(0)")
    A("v_pk_add_f32 v[160:161], v[160:161], v[162:163]"); A("v_pk_add_f32 v[164:165], v[164:165], v[166:167]")
    A("v_pk_add_f32 v[160:161], v[160:161], v[164:165]"); A("v_add_f32 v160, v160, v161")
    A("v_bfi_b32 v98, v7, s62, v160"); A("v_bfi_b32 v99, v7, s63, v160")
    setexec(1, 1)
    A("global_store_dwordx4 v91, v[96:99], s[28:29] sc1")
    fullexec()
    stamp(6)
    A(f"s_movk_i32 s95, {SPIN}")
    A("global_load_dwordx4 v[72:75], v89, s[28:29] sc1")
    A("global_load_dwordx4 v[76:79], v90, s[28:29] sc1")
    A("s_waitcnt vmcnt(4)")
    accB()
    A("s_branch L_ochk")
    A("L_opoll:")
    A("global_load_dwordx4 v[72:75], v89, s[28:29] sc1")
    A("global_load_dwordx4 v[76:79], v90, s[28:29] sc1")
    A("L_ochk:")
    A("s_waitcnt vmcnt(0)")
    check(72, 157, True); check(76, 157, False)
    A("v_and_b32 v157, v7, v157"); A("v_cmp_ne_u32 vcc, 0, v157")
    A("s_sub_u32 s95, s95, 1"); A("s_cbranch_scc1 L_odone")
    A("s_cbranch_vccnz L_opoll")
    A("L_odone:")
    stamp(7)
    A("v_add_f32 v76, v76, v77")
    A("v_mov_b32 v77, v76")
    row_allreduce("v_max_f32", [77])
    A("v_sub_f32 v76, v76, v77"); A("v_exp_f32 v76, v76"); A("s_nop 0")
    A("v_mul_f32 v78, v76, v78")
    for k in range(4): A(f"v_mul_f32 v{72+k}, v76, v{72+k}")
    row_allreduce("v_add_f32", [78, 72, 73, 74, 75])
    A("v_rcp_f32 v78, v78"); A("s_nop 0"); A("v_mul_f32 v78, v100, v78")
    for k in range(4): A(f"v_mul_f32 v{72+k}, v78, v{72+k}")
    for k in range(4): A(f"v_cvt_pk_bf16_f32 v{72+k}, v{72+k}, v{72+k}")
    setexec(0x00010001, 0x00010001)
    A(f"ds_write_b128 v1, v[72:75] offset:{L_CA}")
    fullexec()
    A("s_waitcnt lgkmcnt(0)")

    A("L_join:")
    A("v_and_b32 v155, 1, v6"); A("v_lshlrev_b32 v155, 12, v155"); A("v_lshl_add_u32 v155, v154, 9, v155")
    A("s_lshl_b32 s64, s3, 16"); A("s_lshl_b32 s65, s2, 4"); A("s_add_u32 s64, s64, s65"); A(f"s_add_u32 s64, s64, {FG}")
    A("v_add_u32 v155, s64, v155")
    A("s_barrier")
    A(f"ds_read_b64 v[64:65], v153 offset:{L_CA}")
    A("s_waitcnt lgkmcnt(0)")
    for k in range(4): A(f"v_and_b32 v{16+k}, v64, v{8+k}")
    for k in range(4): A(f"v_and_b32 v{20+k}, v65, v{8+k}")
    A("s_nop 0")
    A("v_mfma_f32_16x16x32_bf16 v[24:27], v[16:19], v[40:43], v[24:27]")
    A("v_mfma_f32_16x16x32_bf16 v[24:27], v[20:23], v[44:47], v[24:27]")
    A("s_nop 7")
    for k in range(4): A(f"v_mov_b32_dpp v{28+k}, v{24+k} row_ror:8 row_mask:0xf bank_mask:0xf")
    for k in range(4): A(f"v_permlane32_swap_b32 v{28+k}, v{32+k}")
    for k in range(4): A(f"v_add_f32 v{24+k}, v{24+k}, v{32+k}")
    tagify(24)
    setexec(0x00ff00ff, 0)
    A("global_store_dwordx4 v155, v[24:27], s[28:29] sc1")
    fullexec()
    stamp(8)
    A("s_cmp_lg_u32 s3, 0"); A("s_cbranch_scc1 L_fin")
    A("s_cmp_ge_u32 s2, 144"); A("s_cbranch_scc1 L_fin")
    A("s_lshl_b32 s64, s2, 12"); A(f"s_add_u32 s64, s64, {FG}"); A("v_add_u32 v155, s64, v4")
    A(f"s_movk_i32 s95, {SPIN}")
    A("L_fpoll:")
    for n in range(4): A(f"global_load_dwordx4 v[{72+4*n}:{75+4*n}], v155, s[28:29] offset:{1024*n} sc1")
    A("s_waitcnt vmcnt(0)")
    for n in range(4): check(72 + 4 * n, 157, n == 0)
    A("v_and_b32 v157, v7, v157"); A("v_cmp_ne_u32 vcc, 0, v157")
    A("s_sub_u32 s95, s95, 1"); A("s_cbranch_scc1 L_fdone")
    A("s_cbranch_vccnz L_fpoll")
    A("L_fdone:")
    for a, b in ((72, 76), (80, 84), (72, 80)):
        A(f"v_pk_add_f32 v[{a}:{a+1}], v[{a}:{a+1}], v[{b}:{b+1}]"); A(f"v_pk_add_f32 v[{a+2}:{a+3}], v[{a+2}:{a+3}], v[{b+2}:{b+3}]")
    row_allreduce("v_add_f32", [72, 73, 74, 75])
    xrow_allreduce("v_add_f32", [72, 73, 74, 75], [76, 77, 78, 79])
    A("v_cvt_pk_bf16_f32 v72, v72, v73"); A("v_cvt_pk_bf16_f32 v73, v74, v75")
    A("s_lshl_b32 s64, s2, 3"); A("v_mov_b32 v155, s64")
    setexec(1, 0)
    A("global_store_dwordx2 v155, v[72:73], s[24:25]")
    A("s_cmp_lg_u32 s2, 0"); A("s_cbranch_scc1 L_fin")
    A("v_mov_b32 v156, s94")
    A("global_store_dword v155, v156, s[28:29]")
    A("L_fin:")
    if stamps:
        stamp(9)
        fullexec()
        A("s_cmp_eq_u32 s3, 0"); A("s_cselect_b32 s64, 0, -1")
        A("s_cmp_eq_u32 s3, 7"); A("s_cselect_b32 s64, 80, s64")
        A("s_cmp_eq_u32 s3, 8"); A("s_cselect_b32 s64, 160, s64")
        A("s_cmp_eq_u32 s64, -1"); A("s_cbranch_scc1 L_end")
        A("s_mul_i32 s65, s2, 240"); A("s_add_u32 s64, s64, s65"); A("s_add_u32 s64, s64, 0x20000000")
        A("v_mov_b32 v155, s64")
        A("s_waitcnt lgkmcnt(0)")
        setexec(1, 0)
        for j in range(10):
            A(f"v_mov_b32 v2, s{70+2*j}"); A(f"v_mov_b32 v3, s{71+2*j}")
            A(f"global_store_dwordx2 v155, v[2:3], s[28:29] offset:{8*j}")
            A("s_nop 1")
    A("L_end:")
    A("s_endpgm")
    return wrap("\n".join(L), 256, 576, LDS_BYTES, 168, sgpr=100)

if __name__ == "__main__":
    open("k1.s", "w").write(gen())
    open("k1s.s", "w").write(gen(stamps=True))
```
